```python
import torch

def _softmax(x, axis=-1):
    return torch.softmax(x, dim=axis)

def _gelu(x):
    return torch.nn.functional.gelu(x, approximate='tanh')

def _silu(x):
    return torch.nn.functional.silu(x)

def _sigmoid(x):
    return torch.sigmoid(x)

def _layernorm(x, axis=-1, eps=1e-05):
    m = x.mean(dim=axis, keepdim=True)
    v = x.var(dim=axis, keepdim=True, unbiased=False)
    return (x - m) / torch.sqrt(v + eps)

def _scatter_add(tgt, idx, src, axis=0):
    return tgt.clone().index_add_(axis, idx, src)

def _segment_sum(src, seg, n):
    out = torch.zeros((n,) + src.shape[1:], dtype=src.dtype)
    return out.index_add_(0, seg, src)

def _pad(x, pw):
    flat = tuple((v for pair in reversed(pw) for v in pair))
    return torch.nn.functional.pad(x, flat)
kernel_name = 'adaLN_cond__grouped_kv_mqa__swiglu_ffn__prompt'

def setup_inputs():

    _w = lambda a: (lambda t: t.to(torch.bfloat16) if t.is_floating_point() else t)(torch.as_tensor(a))

    def _A_setup():
        B, S, D, H = (1, 2048, 576, 32)
        Dh = D // H
        return {'x': _w((lambda *s: torch.randn(*s, dtype=torch.bfloat16) * 0.05)(B, S, D)), 'wq': _w((lambda *s: torch.randn(*s, dtype=torch.bfloat16) * 0.05)(D, H * Dh)), 'wk': _w((lambda *s: torch.randn(*s, dtype=torch.bfloat16) * 0.05)(D, Dh)), 'wv': _w((lambda *s: torch.randn(*s, dtype=torch.bfloat16) * 0.05)(D, Dh)), 'wo': _w((lambda *s: torch.randn(*s, dtype=torch.bfloat16) * 0.05)(H * Dh, D))}
    _A_in = _A_setup()

    def _B_setup():
        B, S, D, F = (1, 2048, 576, 4608)
        return {'x': _w((lambda *s: torch.randn(*s, dtype=torch.bfloat16) * 0.05)(B, S, D)), 'w_gate': _w((lambda *s: torch.randn(*s, dtype=torch.bfloat16) * 0.05)(D, F)), 'w_up': _w((lambda *s: torch.randn(*s, dtype=torch.bfloat16) * 0.05)(D, F)), 'w_down': _w((lambda *s: torch.randn(*s, dtype=torch.bfloat16) * 0.05)(F, D))}
    _B_in = _B_setup()
    return {'A_x': _A_in['x'], 'A_wq': _A_in['wq'], 'A_wk': _A_in['wk'], 'A_wv': _A_in['wv'], 'A_wo': _A_in['wo'], 'B_x': _B_in['x'], 'B_w_gate': _B_in['w_gate'], 'B_w_up': _B_in['w_up'], 'B_w_down': _B_in['w_down'], 'c': _w((lambda *s: torch.randn(*s, dtype=torch.bfloat16) * 0.1)(1, 576) * 8.0), 'w_mod': _w((lambda *s: torch.randn(*s, dtype=torch.bfloat16) * 0.1)(576, 6 * 576) * 576 ** (-0.5) * 8.0)}

def reference(A_x, A_wq, A_wk, A_wv, A_wo, B_x, B_w_gate, B_w_up, B_w_down, c, w_mod):

    def _A_ref(x, wq, wk, wv, wo):
        B, S, D = x.shape
        H = 32
        Dh = D // H
        q = (lambda x, *d: x.permute(*d))((x @ wq).reshape(B, S, H, Dh), 0, 2, 1, 3)
        k = x @ wk
        v = x @ wv
        scores = torch.einsum('bhqd,bkd->bhqk', q, k) * Dh ** (-0.5)
        p = _softmax(scores, axis=-1)
        o = torch.einsum('bhqk,bkd->bhqd', p, v)
        return (lambda x, *d: x.permute(*d))(o, 0, 2, 1, 3).reshape(B, S, H * Dh) @ wo

    def _B_ref(x, w_gate, w_up, w_down):
        g = _silu(x @ w_gate)
        u = x @ w_up
        return g * u @ w_down
    x = A_x
    mod = (_silu(c) @ w_mod).reshape(c.shape[0], 6, 1, -1)
    sa, ca, ga, sb, cb, gb = (mod[:, 0].clone(), mod[:, 1].clone(), mod[:, 2].clone(), mod[:, 3].clone(), mod[:, 4].clone(), mod[:, 5].clone())
    h = _layernorm(x, axis=-1) * (1 + ca) + sa
    x = x + ga * _A_ref(h, A_wq, A_wk, A_wv, A_wo)
    h = _layernorm(x, axis=-1) * (1 + cb) + sb
    x = x + gb * _B_ref(h, B_w_gate, B_w_up, B_w_down)
    return x
```

```python
import re

REG_RE = re.compile(r'^(-|abs\()?([vsa])(\d+)\)?$')
RNG_RE = re.compile(r'^(-|abs\()?([vsa])\[(\d+):(\d+)\]\)?$')

def regs_of(op):
    op = op.strip()
    m = REG_RE.match(op)
    if m: return {(m.group(2), int(m.group(3)))}
    m = RNG_RE.match(op)
    if m: return {(m.group(2), i) for i in range(int(m.group(3)), int(m.group(4)) + 1)}
    if op in ('vcc', 'vcc_lo', 'vcc_hi'): return {('vcc', 0)}
    if op in ('exec', 'exec_lo', 'exec_hi'): return {('exec', 0)}
    if op == 'm0': return {('m0', 0)}
    return set()

TRANS = ('v_exp_f32', 'v_log_f32', 'v_rcp_f32', 'v_rsq_f32', 'v_sqrt_f32', 'v_sin_f32', 'v_cos_f32', 'v_rcp_iflag_f32')

class Ins:
    def __init__(self, text):
        self.text = text
        t = text.split(';')[0].strip()
        self.t = t
        parts = t.split(None, 1)
        self.op = parts[0] if parts else ''
        rest = parts[1] if len(parts) > 1 else ''
        ops = []; cur = ''; depth = 0
        for ch in rest:
            if ch == '[': depth += 1
            if ch == ']': depth -= 1
            if ch == ',' and depth == 0:
                ops.append(cur.strip()); cur = ''
            else: cur += ch
        if cur.strip(): ops.append(cur.strip())
        mods = ''
        if ops:
            last = ops[-1]; depth = 0; cut = None
            for i, ch in enumerate(last):
                if ch == '[': depth += 1
                if ch == ']': depth -= 1
                if ch == ' ' and depth == 0: cut = i; break
            if cut is not None:
                mods = last[cut:]; ops[-1] = last[:cut]
        self.ops = ops; self.mods = mods
        op = self.op
        self.is_mfma = op.startswith('v_mfma')
        self.is_valu = op.startswith('v_') and not self.is_mfma
        self.is_salu = op.startswith('s_') and not op.startswith(('s_load', 's_waitcnt', 's_nop', 's_barrier', 's_branch', 's_cbranch', 's_endpgm', 's_memtime', 's_memrealtime', 's_setprio', 's_sleep', 's_buffer_load'))
        self.is_ds = op.startswith('ds_')
        self.is_vmem = op.startswith(('buffer_', 'global_', 'flat_'))
        self.is_trans = op.replace('_e32', '').replace('_e64', '') in TRANS
        self.is_dpp = ('_dpp' in op) or ('quad_perm' in mods) or ('row_' in mods)
        self.is_perm = op.startswith('v_permlane')
        self.is_lds_dma = self.is_vmem and (' lds' in (mods + ' ') or '_lds_' in op)
        W = set(); R = set()
        o = [regs_of(x) for x in ops]
        if self.is_mfma:
            W |= o[0]; self.A = o[1]; self.B = o[2]; self.C = o[3] if len(o) > 3 else set(); R |= self.A | self.B | self.C
            self.passes = 8 if '32x32' in op else 4
        elif self.is_valu:
            if op.startswith('v_cmp'):
                W |= o[0]; [R.update(x) for x in o[1:]]
            elif self.is_perm:
                W |= o[0] | o[1]; R |= o[0] | o[1]
            elif op.startswith(('v_add_co', 'v_sub_co', 'v_addc_co', 'v_subb_co', 'v_subrev_co')):
                W |= o[0] | o[1]; [R.update(x) for x in o[2:]]
            else:
                W |= o[0]; [R.update(x) for x in o[1:]]
                if op.startswith(('v_fmac', 'v_pk_fmac', 'v_dot2c', 'v_dot4c')) or 'UNUSED_PRESERVE' in mods or self.is_dpp: R |= o[0]
                if op.startswith('v_cndmask') and len(ops) == 3: R |= {('vcc', 0)}
            R |= {('exec', 0)} if False else set()
        elif self.is_ds:
            if op.startswith(('ds_read', 'ds_bpermute', 'ds_permute', 'ds_swizzle')):
                W |= o[0]; [R.update(x) for x in o[1:]]
            else:
                [R.update(x) for x in o]
        elif self.is_vmem:
            if self.is_lds_dma:
                [R.update(x) for x in o]; R |= {('m0', 0)}
            elif '_load' in op or ('atomic' in op and 'sc0' in mods):
                W |= o[0]; [R.update(x) for x in o[1:]]
                if 'atomic' in op: R |= o[0]
            else:
                [R.update(x) for x in o]
        elif op.startswith('s_'):
            if op.startswith(('s_cmp', 's_cbranch', 's_branch', 's_waitcnt', 's_nop', 's_barrier', 's_endpgm', 's_setprio', 's_sleep')):
                [R.update(x) for x in o]
            else:
                if o: W |= o[0]; [R.update(x) for x in o[1:]]
        self.W = W; self.R = R
        self.wide_store = self.is_vmem and ('store_dwordx4' in op or 'store_dwordx3' in op)
        self.store_data = set()
        if self.wide_store:
            self.store_data = o[0] if op.startswith('buffer') else o[1]
    def states(self):
        if self.op == 's_nop': return int(self.ops[0], 0) + 1
        return 1

def need(p, c):
    n = 0
    vW = {r for r in p.W if r[0] in 'va'}
    sW = {r for r in p.W if r[0] in ('s', 'vcc')}
    if p.is_valu:
        if c.is_mfma and (vW & c.R): n = max(n, 2)
        if c.is_valu and c.is_dpp and (vW & c.R): n = max(n, 2)
        if c.is_perm and (vW & c.R): n = max(n, 2)
        if c.op.startswith(('v_readlane', 'v_readfirstlane')) and (vW & c.R): n = max(n, 1)
        if p.is_trans and c.is_valu and not c.is_trans and (vW & c.R): n = max(n, 1)
        if p.is_trans and (c.is_mfma or c.is_vmem or c.is_ds) and (vW & c.R): n = max(n, 2 if c.is_mfma else 1)
        if ('sdwa' in p.op or 'op_sel' in p.mods) and c.is_valu and (vW & (c.R | c.W)): n = max(n, 1)
        if sW:
            if c.is_valu and (sW & c.R): n = max(n, 4 if c.op.startswith(('v_readlane', 'v_writelane')) else 2)
            if c.is_vmem and (sW & c.R): n = max(n, 5)
            if c.is_salu and (sW & c.R): n = max(n, 1)
    if p.is_mfma:
        D = p.W
        tab_ab = {4: 8, 8: 12}[p.passes]
        tab_c = {4: 6, 8: 10}[p.passes]
        if c.is_mfma:
            if D & (c.A | c.B): n = max(n, tab_ab)
            if D & c.C:
                if not (c.C == D and c.passes == p.passes): n = max(n, tab_c)
            elif D & c.W: n = max(n, tab_ab)
        elif (c.is_valu or c.is_vmem or c.is_ds) and (D & (c.R | c.W)): n = max(n, tab_ab)
        if c.is_valu and (p.C & c.W): n = max(n, {4: 3, 8: 7}[p.passes])
        if (c.is_ds or c.is_vmem) and (p.C & c.W): n = max(n, {4: 3, 8: 7}[p.passes])
    if p.is_salu and ('m0', 0) in p.W and c.is_lds_dma: n = max(n, 1)
    if p.wide_store and (p.store_data & c.W): n = max(n, 2 if c.is_valu else 1)
    return n

class Asm:
    def __init__(self):
        self.items = []
    def __call__(self, s):
        for line in s.strip('\n').split('\n'):
            line = line.strip()
            if not line: continue
            if line.startswith(';'): self.items.append(('r', '    ' + line)); continue
            if line.endswith(':') and ' ' not in line: self.items.append(('l', line[:-1])); continue
            if line.startswith('.'): self.items.append(('r', line)); continue
            self.items.append(('i', Ins(line)))
    def label(self, l): self.items.append(('l', l))
    def raw(self, s): self.items.append(('r', s))
    def fix_hazards(self, window=24):
        out = []
        hist = []
        def dist_needed(c, hist):
            d = 0; req = 0
            for p in reversed(hist):
                n = need(p, c)
                if n > d: req = max(req, n - d)
                d += p.states()
                if d > window: break
            return req
        label_pos = {}
        for kind, x in self.items:
            if kind == 'i':
                req = dist_needed(x, hist)
                while req > 0:
                    k = min(req, 16)
                    nop = Ins(f's_nop {k-1}')
                    out.append(('i', nop)); hist.append(nop); req -= k
                out.append((kind, x)); hist.append(x)
                if x.op.startswith(('s_cbranch', 's_branch')) and x.ops and x.ops[0] in label_pos:
                    top = [y for k2, y in out[label_pos[x.ops[0]]:] if k2 == 'i'][:window]
                    h = list(hist); extra = 0
                    for c in top:
                        r = dist_needed(c, h)
                        if r > 0: extra = max(extra, r)
                        h.append(c)
                    if extra > 0:
                        br = out.pop(); hist.pop()
                        while extra > 0:
                            k = min(extra, 16)
                            nop = Ins(f's_nop {k-1}'); out.append(('i', nop)); hist.append(nop); extra -= k
                        out.append(br); hist.append(br[1])
                if x.op in ('s_endpgm', 's_branch'): hist = []
            else:
                if kind == 'l': label_pos[x] = len(out)
                out.append((kind, x))
        self.items = out
    def text(self):
        s = []
        for kind, x in self.items:
            if kind == 'i': s.append('    ' + x.text)
            elif kind == 'l': s.append(x + ':')
            else: s.append(x)
        return '\n'.join(s) + '\n'
```

```python
from asmlib import Asm
G = None
def add(g):
    global G
    G = g
    gen_k3()
    try:
        import gen3
        gen3.add(g)
    except ImportError:
        pass

XCH = 153600
def gen_k3():
    KA, srd, f2u = G.KA, G.srd, G.f2u
    KVBLK = G.KVBLK
    a = Asm()
    QLO = {0: 8, 1: 12}; QHI = {0: 16, 1: 18}
    KL = 20; KH = 24; V0 = 28; V1 = 32
    S = {0: 48, 1: 64}; P = {0: 80, 1: 88}; O = {0: 96, 1: 112}; E = 36
    a("s_cmp_ge_u32 s2, 256")
    a("s_cbranch_scc1 K3_END")
    a(f"s_load_dwordx2 s[12:13], s[0:1], {KA['ws']}")
    a("v_and_b32 v1, 63, v0")
    a("v_lshrrev_b32 v2, 6, v0")
    a("v_readfirstlane_b32 s20, v2")
    a("s_lshr_b32 s21, s20, 2")
    a("s_and_b32 s22, s20, 3")
    a("s_mov_b32 s36, 0")
    a("v_and_b32 v5, 31, v1")
    a("v_lshrrev_b32 v6, 5, v1")
    a("s_waitcnt lgkmcnt(0)")
    srd(a, 4, 12, G.ACTSZ, G.QB)
    srd(a, 8, 12, G.KVSZ, G.KVI)
    srd(a, 16, 12, 512, G.KN)
    srd(a, 40, 12, G.ACTSZ, G.OB)
    a("K3_RESTART:")
    a("s_lshl_b32 s23, s2, 3")
    a("s_lshl_b32 s24, s22, 1")
    a("s_add_u32 s23, s23, s24")
    a("s_mul_i32 s23, s23, 1152")
    a("v_mul_u32_u24 v7, 36, v5")
    a("v_lshl_add_u32 v44, v6, 4, v7")
    a("v_cmp_gt_u32 vcc, 32, v1")
    a("v_mov_b32 v45, 0x7fffffff")
    a("v_cndmask_b32 v45, v45, v7, vcc")
    a(f"buffer_load_dwordx4 v[{QLO[0]}:{QLO[0]+3}], v44, s[4:7], s23 offen")
    a(f"buffer_load_dwordx4 v[{QLO[1]}:{QLO[1]+3}], v44, s[4:7], s23 offen offset:1152")
    a(f"buffer_load_dword v{QHI[0]}, v45, s[4:7], s23 offen offset:32")
    a(f"buffer_load_dword v{QHI[1]}, v45, s[4:7], s23 offen offset:1184")
    a("v_lshlrev_b32 v46, 3, v1")
    a("buffer_load_dwordx2 v[38:39], v46, s[16:19], 0 offen")
    a("v_lshlrev_b32 v47, 4, v1")
    a(f"s_mul_i32 s25, s21, {4*KVBLK}")
    a("s_lshl_b32 s26, s22, 10")
    a("s_add_u32 s26, s26, s25")
    for ph in range(4):
        for i in range(5):
            a(f"s_add_u32 s27, s26, {ph*KVBLK + i*4096}")
            a("s_mov_b32 m0, s27")
            a("buffer_load_dwordx4 v47, s[8:11], s27 offen lds")
    a("v_lshlrev_b32 v2, 4, v1")
    a("v_add_u32 v2, s25, v2")
    a("v_lshlrev_b32 v3, 2, v5")
    a("v_add_u32 v3, s25, v3")
    a("v_subrev_u32 v4, 20, v5")
    a("v_cmp_lt_u32 vcc, 23, v5")
    a("v_subrev_u32 v46, 12, v5")
    a("v_cndmask_b32 v4, v4, v46, vcc")
    a("v_cmp_lt_u32 vcc, 27, v5")
    a("v_subrev_u32 v46, 24, v5")
    a("v_cndmask_b32 v4, v4, v46, vcc")
    a("v_cmp_eq_u32 vcc, 19, v5")
    a("v_mov_b32 v46, 4")
    a("v_cndmask_b32 v4, v4, v46, vcc")
    a("v_cmp_gt_u32 vcc, 19, v5")
    a("v_cndmask_b32 v4, v4, v5, vcc")
    a("v_lshlrev_b32 v4, 4, v4")
    a("v_mul_u32_u24 v46, 304, v6")
    a("v_add3_u32 v4, v4, v46, s25")
    a(f"v_mov_b32 v{KH+1}, 0x3f803f80")
    for t in (0, 1):
        for j in range(16): a(f"v_mov_b32 v{O[t]+j}, 0")
    a("s_waitcnt vmcnt(20)")
    a("v_max_f32 v38, v38, v39")
    for m in ("quad_perm:[1,0,3,2]", "quad_perm:[2,3,0,1]", "row_half_mirror", "row_mirror"):
        a(f"v_max_f32_dpp v38, v38, v38 {m} row_mask:0xf bank_mask:0xf")
    a("v_mov_b32 v39, v38")
    a("v_permlane16_swap_b32 v38, v39")
    a("v_max_f32 v38, v38, v39")
    a("v_mov_b32 v39, v38")
    a("v_permlane32_swap_b32 v38, v39")
    a("v_max_f32 v38, v38, v39")
    a("v_cmp_gt_u32 vcc, 32, v1")
    for t in (0, 1):
        a(f"v_dot2_f32_bf16 v40, v{QHI[t]}, v{QHI[t]}, 0")
        for j in range(4): a(f"v_dot2_f32_bf16 v40, v{QLO[t]+j}, v{QLO[t]+j}, v40")
        a("s_nop 2")
        a("v_mov_b32 v41, v40")
        a("v_permlane32_swap_b32 v40, v41")
        a("v_add_f32 v40, v40, v41")
        a("v_mul_f32 v40, v40, v38")
        a("v_sqrt_f32 v40, v40")
        a(f"v_mov_b32 v41, {f2u(-0.0625):#x}")
        a(f"v_fmac_f32 v41, {f2u(-1.01):#x}, v40")
        a("v_mov_b32 v42, 0")
        a("v_cvt_pk_bf16_f32 v41, v41, v42")
        a(f"v_cndmask_b32 v{QHI[t]+1}, v42, v41, vcc")
    a("s_cmp_eq_u32 s36, 0")
    a("s_cbranch_scc1 K3_FAST")
    a("s_waitcnt vmcnt(0)")
    a("s_barrier")
    a(f"v_mov_b32 v{QHI[0]+1}, 0")
    a(f"v_mov_b32 v{QHI[1]+1}, 0")
    a("v_mov_b32 v36, 0xff800000")
    a("v_mov_b32 v37, 0xff800000")
    a("s_mov_b32 s28, 0")
    a("K3_MAXLOOP:")
    a("s_lshr_b32 s29, s28, 3")
    a(f"s_mul_i32 s29, s29, {KVBLK}")
    a("s_and_b32 s31, s28, 7")
    a("s_lshl_b32 s32, s31, 10")
    a("s_add_u32 s32, s32, s29")
    a("s_lshl_b32 s31, s31, 7")
    a("s_add_u32 s31, s31, s29")
    a("v_add_u32 v40, s32, v2")
    a("v_add_u32 v41, s31, v3")
    a(f"ds_read_b128 v[{KL}:{KL+3}], v40")
    a(f"ds_read_b32 v{KH}, v41 offset:8192")
    a("s_waitcnt lgkmcnt(0)")
    for t in (0, 1):
        a(f"v_mfma_f32_32x32x16_bf16 v[{S[t]}:{S[t]+15}], v[{KL}:{KL+3}], v[{QLO[t]}:{QLO[t]+3}], 0")
        a(f"v_mfma_f32_32x32x8_bf16 v[{S[t]}:{S[t]+15}], v[{KH}:{KH+1}], v[{QHI[t]}:{QHI[t]+1}], v[{S[t]}:{S[t]+15}]")
    for t in (0, 1):
        for j in range(8): a(f"v_max3_f32 v{36+t}, v{36+t}, v{S[t]+2*j}, v{S[t]+2*j+1}")
    a("s_add_u32 s28, s28, 1")
    a("s_cmp_lt_u32 s28, 32")
    a("s_cbranch_scc1 K3_MAXLOOP")
    for t in (0, 1):
        a(f"v_mov_b32 v40, v{36+t}")
        a(f"v_permlane32_swap_b32 v{36+t}, v40")
        a(f"v_max_f32 v{36+t}, v{36+t}, v40")
    a("s_lshl_b32 s28, s20, 9")
    a(f"s_add_u32 s28, s28, {XCH+64}")
    a("v_lshlrev_b32 v40, 3, v1")
    a("v_add_u32 v41, s28, v40")
    a("ds_write_b64 v41, v[36:37]")
    a("s_xor_b32 s28, s20, 4")
    a("s_lshl_b32 s28, s28, 9")
    a(f"s_add_u32 s28, s28, {XCH+64}")
    a("v_add_u32 v41, s28, v40")
    a("s_waitcnt lgkmcnt(0)")
    a("s_barrier")
    a("ds_read_b64 v[40:41], v41")
    a("s_waitcnt lgkmcnt(0)")
    a("v_cmp_gt_u32 vcc, 32, v1")
    for t in (0, 1):
        a(f"v_max_f32 v{36+t}, v{36+t}, v{40+t}")
        a(f"v_sub_f32 v{36+t}, 0, v{36+t}")
        a(f"v_cvt_pk_bf16_f32 v42, v{36+t}, v{36+t}")
        a("v_lshlrev_b32 v42, 16, v42")
        a(f"v_sub_f32 v43, v{36+t}, v42")
        a("v_cvt_pk_bf16_f32 v42, v42, v43")
        a("v_mov_b32 v43, 0")
        a(f"v_cndmask_b32 v{QHI[t]+1}, v43, v42, vcc")
    a("K3_FAST:")
    a("s_waitcnt vmcnt(15)")
    a("s_barrier")
    def koff(j): return (j // 8) * KVBLK + (j % 8) * 1024
    def hoff(j): return (j // 8) * KVBLK + 8192 + (j % 8) * 128
    def voff(j, s): return (j // 8) * KVBLK + 9216 + ((j % 8) * 2 + s) * 608
    def qk(t):
        return [f"v_mfma_f32_32x32x16_bf16 v[{S[t]}:{S[t]+15}], v[{KL}:{KL+3}], v[{QLO[t]}:{QLO[t]+3}], 0",
                f"v_mfma_f32_32x32x8_bf16 v[{S[t]}:{S[t]+15}], v[{KH}:{KH+1}], v[{QHI[t]}:{QHI[t]+1}], v[{S[t]}:{S[t]+15}]"]
    def pv(t, s):
        vv = V0 if s == 0 else V1
        return f"v_mfma_f32_32x32x16_bf16 v[{O[t]}:{O[t]+15}], v[{vv}:{vv+3}], v[{P[t]+4*s}:{P[t]+4*s+3}], v[{O[t]}:{O[t]+15}]"
    a(f"ds_read_b128 v[{KL}:{KL+3}], v2")
    a(f"ds_read_b32 v{KH}, v3 offset:8192")
    a(f"ds_read_b128 v[{V0}:{V0+3}], v4 offset:{voff(0,0)}")
    a(f"ds_read_b128 v[{V1}:{V1+3}], v4 offset:{voff(0,1)}")
    a("s_waitcnt lgkmcnt(2)")
    for t in (0, 1):
        for m in qk(t): a(m)
    a(f"ds_read_b128 v[{KL}:{KL+3}], v2 offset:{koff(1)}")
    a(f"ds_read_b32 v{KH}, v3 offset:{hoff(1)}")
    a("s_waitcnt lgkmcnt(2)")
    for j in range(4): a(f"v_mov_b32 v{P[1]+4+j}, 0")
    a("s_mov_b32 s28, 0")
    a("s_nop 7")
    a(".p2align 6")
    a("K3_LOOP:")
    def e(t, j): return f"v_exp_f32 v{E + j % 8}, v{S[t]+j}"
    def c(t, j): return f"v_cvt_pk_bf16_f32 v{P[t]+j//2}, v{E + j % 8}, v{E + (j+1) % 8}"
    for j8 in range(8):
        for t in (0, 1):
            o = 1 - t
            a(e(t, 0)); a(e(t, 1))
            if t == 0:
                pass
            else:
                a("s_waitcnt lgkmcnt(0)")
            a(pv(o, 1))
            if t == 0:
                a(f"ds_read_b128 v[{V1}:{V1+3}], v4 offset:{voff(j8,1)}")
            a(e(t, 2)); a(e(t, 3)); a(c(t, 0)); a(e(t, 4)); a(e(t, 5)); a(c(t, 2)); a(e(t, 6)); a(e(t, 7)); a(c(t, 4))
            a(e(t, 8)); a(c(t, 6)); a(e(t, 9)); a(e(t, 10))
            if t == 0: a("s_waitcnt lgkmcnt(3)")
            a(pv(t, 0))
            if t == 1:
                a(f"ds_read_b128 v[{V0}:{V0+3}], v4 offset:{voff(j8+1,0)}")
            a(e(t, 11)); a(c(t, 8)); a(e(t, 12)); a(e(t, 13)); a(c(t, 10)); a(e(t, 14)); a(e(t, 15))
            if t == 0: a("s_waitcnt lgkmcnt(1)")
            m1, m2 = qk(t)
            a(m1); a(c(t, 12)); a(m2); a(c(t, 14))
            if t == 1:
                a(f"ds_read_b128 v[{KL}:{KL+3}], v2 offset:{koff(j8+2)}")
                a(f"ds_read_b32 v{KH}, v3 offset:{hoff(j8+2)}")
        if j8 == 4:
            a("s_cmp_lg_u32 s28, 0")
            a("s_cbranch_scc1 K3_NOBAR")
            a("s_waitcnt vmcnt(0)")
            a("s_barrier")
            a("K3_NOBAR:")
    a(f"v_add_u32 v2, {KVBLK}, v2")
    a(f"v_add_u32 v3, {KVBLK}, v3")
    a(f"v_add_u32 v4, {KVBLK}, v4")
    a("s_add_u32 s28, s28, 1")
    a("s_cmp_lt_u32 s28, 4")
    a("s_cbranch_scc1 K3_LOOP")
    a(pv(1, 1))
    a("s_waitcnt lgkmcnt(0)")
    a("s_barrier")
    a(f"v_min_f32 v36, v{O[0]+10}, v{O[1]+10}")
    a(f"v_mov_b32 v37, {f2u(2.0**-40):#x}")
    a("v_cmp_nlt_f32 vcc, v37, v36")
    a("s_and_b32 s29, vcc_lo, -1")
    a("s_cselect_b32 s29, 1, 0")
    a("v_mov_b32 v37, s29")
    a("s_lshl_b32 s31, s20, 2")
    a(f"s_add_u32 s31, s31, {XCH}")
    a("v_mov_b32 v36, s31")
    a("ds_write_b32 v36, v37")
    a("s_mul_i32 s31, s20, 3072")
    a("v_lshlrev_b32 v36, 4, v1")
    a("v_add_u32 v37, s31, v36")
    a("s_xor_b32 s31, s20, 4")
    a("s_mul_i32 s31, s31, 3072")
    a("v_add_u32 v38, s31, v36")
    a("s_cmp_eq_u32 s21, 0")
    a("s_cbranch_scc1 K3_KH0")
    for r in range(3):
        a(f"ds_write_b128 v37, v[{O[0]+4*r}:{O[0]+4*r+3}] offset:{1024*r}")
    for j in range(12): a(f"v_mov_b32 v{O[0]+j}, v{O[1]+j}")
    a("s_add_u32 s23, s23, 1152")
    a("s_branch K3_SENT")
    a("K3_KH0:")
    for r in range(3):
        a(f"ds_write_b128 v37, v[{O[1]+4*r}:{O[1]+4*r+3}] offset:{1024*r}")
    a("K3_SENT:")
    a("s_waitcnt lgkmcnt(0)")
    a("s_barrier")
    a(f"v_mov_b32 v39, {XCH}")
    a("ds_read_b128 v[48:51], v39")
    a("ds_read_b128 v[52:55], v39 offset:16")
    for r in range(3):
        a(f"ds_read_b128 v[{64+4*r}:{67+4*r}], v38 offset:{1024*r}")
    a("s_waitcnt lgkmcnt(3)")
    a("v_or3_b32 v48, v48, v49, v50")
    a("v_or3_b32 v52, v52, v53, v54")
    a("v_or3_b32 v48, v48, v51, v55")
    a("v_or_b32 v48, v48, v52")
    a("v_readfirstlane_b32 s29, v48")
    a("s_andn2_b32 s29, s29, s36")
    a("s_cmp_lg_u32 s29, 0")
    a("s_cbranch_scc0 K3_FIN")
    a("s_mov_b32 s36, 1")
    a("s_waitcnt lgkmcnt(0)")
    a("s_barrier")
    a("s_branch K3_RESTART")
    a("K3_FIN:")
    a("s_waitcnt lgkmcnt(0)")
    Of = O[0]
    for j in range(12): a(f"v_add_f32 v{Of+j}, v{Of+j}, v{64+j}")
    a(f"v_mov_b32 v36, v{Of+10}")
    a(f"v_mov_b32 v37, v{Of+10}")
    a("v_permlane32_swap_b32 v36, v37")
    a("v_rcp_f32 v36, v36")
    for j in range(10): a(f"v_mul_f32 v{Of+j}, v{Of+j}, v36")
    for j in range(5): a(f"v_cvt_pk_bf16_f32 v{48+j}, v{Of+2*j}, v{Of+2*j+1}")
    a("v_lshl_add_u32 v44, v6, 3, v7")
    a("buffer_store_dwordx2 v[48:49], v44, s[40:43], s23 offen")
    a("buffer_store_dwordx2 v[50:51], v44, s[40:43], s23 offen offset:16")
    a("buffer_store_dword v52, v45, s[40:43], s23 offen offset:32")
    a("K3_END:")
    a("s_endpgm")
    G.kernels.append(("k3_kernel", 256, 512, 163840, 128, 48, a))
```

```python
from asmlib import Asm
G = None
def add(g):
    global G
    G = g
    gen_k4(); gen_k4b(); gen_k5(); gen_k6()

class VM:
    def __init__(self, a): self.a = a; self.q = []
    def issue(self, tag): self.q.append(tag)
    def wait(self, tag):
        idx = [i for i, t in enumerate(self.q) if t == tag]
        if not idx: return
        n = len(self.q) - 1 - idx[-1]
        self.a(f"s_waitcnt vmcnt({min(n, 63)})")
        if n <= 63: self.q = self.q[idx[-1] + 1:]

def gen_k4():
    KA, srd, f2u = G.KA, G.srd, G.f2u
    a = Asm()
    a("s_cmp_ge_u32 s2, 192")
    a("s_cbranch_scc1 K4_END")
    a(f"s_load_dwordx2 s[12:13], s[0:1], {KA['ws']}")
    a(f"s_load_dwordx2 s[4:5], s[0:1], {KA['wo']}")
    a(f"s_load_dwordx2 s[40:41], s[0:1], {KA['x']}")
    a("s_mov_b32 s30, 0xffff0000")
    a("v_and_b32 v1, 63, v0")
    a("v_lshrrev_b32 v2, 6, v0")
    a("v_readfirstlane_b32 s20, v2")
    a("s_and_b32 s21, s2, 7")
    a("s_lshr_b32 s22, s2, 3")
    a("s_mul_i32 s23, s22, 43")
    a("s_lshr_b32 s23, s23, 8")
    a("s_mul_i32 s24, s23, 6")
    a("s_sub_u32 s24, s22, s24")
    a("s_lshl_b32 s21, s21, 2")
    a("s_add_u32 s21, s21, s23")
    a("s_lshl_b32 s25, s21, 2")
    a("s_add_u32 s25, s25, s20")
    a("s_mul_i32 s26, s25, 18432")
    a("v_lshrrev_b32 v5, 4, v1")
    a("v_and_b32 v2, 15, v1")
    a("v_mul_u32_u24 v2, 1152, v2")
    a("v_lshl_add_u32 v3, v5, 4, v2")
    a("v_lshl_add_u32 v2, v5, 3, v2")
    a("s_waitcnt lgkmcnt(0)")
    srd(a, 8, 12, G.ACTSZ, G.OB)
    srd(a, 4, 4, 576*1152)
    XF = 8
    for i3 in range(3):
        r, p, t = 80+i3, 84, 85
        a(f"v_add_u32 v{p}, {64*i3}, v1")
        a(f"v_mul_u32_u24 v{t}, 43691, v{p}")
        a(f"v_lshrrev_b32 v{t}, 19, v{t}")
        a(f"v_mul_u32_u24 v86, 12, v{t}")
        a(f"v_sub_u32 v{p}, v{p}, v86")
        a(f"v_bfe_u32 v86, v{t}, 3, 1")
        a(f"v_lshlrev_b32 v86, 1, v86")
        a(f"v_xor_b32 v{p}, v{p}, v86")
        a(f"v_lshlrev_b32 v{p}, 4, v{p}")
        a(f"v_mul_u32_u24 v{t}, 1152, v{t}")
        a(f"v_add_u32 v{r}, v{t}, v{p}")
    a("s_mul_i32 s27, s24, 192")
    a("s_mul_i32 s28, s20, 18432")
    a("s_add_u32 s27, s27, s28")
    a("s_mul_i32 s28, s20, 3072")
    for g in range(9):
        for i3 in range(3):
            a(f"s_add_u32 m0, s28, {g*12288 + i3*1024}")
            a(f"buffer_load_dwordx4 v{80+i3}, s[4:7], s27 offen lds")
        if g < 8: a(f"s_add_u32 s27, s27, {64*1152}")
        for s in (2*g, 2*g+1):
            a(f"buffer_load_dwordx4 v[{XF+4*s}:{XF+4*s+3}], v3, s[8:11], s26 offen offset:{64*s}")
    srd(a, 40, 40, G.ACTSZ)
    srd(a, 44, 12, 13824, G.MODF)
    a("s_mul_i32 s27, s24, 192")
    a("s_add_u32 s26, s26, s27")
    a("s_mul_i32 s27, s24, 384")
    a("s_add_u32 s27, s27, 4608")
    a("v_lshlrev_b32 v4, 4, v5")
    XE = 164; GE = 176
    for t in range(6):
        a(f"buffer_load_dwordx2 v[{XE+2*t}:{XE+2*t+1}], v2, s[40:43], s26 offen offset:{32*t}")
        a(f"buffer_load_dwordx4 v[{GE+4*t}:{GE+4*t+3}], v4, s[44:47], s27 offen offset:{64*t}")
    a("v_bfe_u32 v7, v1, 2, 2")
    a("v_lshl_add_u32 v7, v5, 3, v7")
    a("v_and_b32 v80, 3, v1")
    a("v_lshlrev_b32 v80, 3, v80")
    a("v_mul_u32_u24 v81, 192, v7")
    a("v_add_u32 v81, v81, v80")
    a("v_and_b32 v82, 1, v5")
    a("v_lshlrev_b32 v82, 5, v82")
    a("v_add_u32 v83, v81, v82")
    a("v_sub_u32 v84, v81, v82")
    a("v_add_u32 v85, 0xd800, v83")
    a("v_add_u32 v86, 0xd800, v84")
    a("s_waitcnt vmcnt(12)")
    a("s_barrier")
    ACC = 140; FR = 100; nfr = 6
    seq = [(s, t) for s in range(18) for t in range(6)]
    def rd(idx):
        s, t = seq[idx]
        f = FR + 4*(idx % nfr)
        base = (83 if t % 2 == 0 else 84) + (2 if s >= 9 else 0)
        off = (s % 9)*6144 + t*32
        a(f"ds_read_b64_tr_b16 v[{f}:{f+1}], v{base} offset:{off}")
        a(f"ds_read_b64_tr_b16 v[{f+2}:{f+3}], v{base} offset:{off+768}")
    PF = 4
    for i in range(PF): rd(i)
    for idx, (s, t) in enumerate(seq):
        if idx + PF < len(seq): rd(idx + PF)
        rem = min(PF, len(seq) - 1 - idx)
        a(f"s_waitcnt lgkmcnt({2*rem})")
        f = FR + 4*(idx % nfr)
        c = "0" if s == 0 else f"v[{ACC+4*t}:{ACC+4*t+3}]"
        a(f"v_mfma_f32_16x16x32_bf16 v[{ACC+4*t}:{ACC+4*t+3}], v[{f}:{f+3}], v[{XF+4*s}:{XF+4*s+3}], {c}")
    srd(a, 16, 12, G.ACTSZ, G.X1)
    a("s_waitcnt vmcnt(0)")
    for t in range(6):
        c = ACC+4*t
        for d in range(2):
            a(f"v_lshlrev_b32 v100, 16, v{XE+2*t+d}")
            a(f"v_and_b32 v101, s30, v{XE+2*t+d}")
            a(f"v_pk_fma_f32 v[100:101], v[{c+2*d}:{c+2*d+1}], v[{GE+4*t+2*d}:{GE+4*t+2*d+1}], v[100:101]")
            a(f"v_cvt_pk_bf16_f32 v{102+2*t+d}, v100, v101")
        a(f"buffer_store_dwordx2 v[{102+2*t}:{103+2*t}], v2, s[16:19], s26 offen offset:{32*t}")
    a("K4_END:")
    a("s_endpgm")
    G.kernels.append(("k4_kernel", 192, 256, 110592, 200, 48, a))

def gen_k4b():
    KA, srd, f2u = G.KA, G.srd, G.f2u
    a = Asm()
    a("s_cmp_ge_u32 s2, 128")
    a("s_cbranch_scc1 K4B_END")
    a(f"s_load_dwordx2 s[12:13], s[0:1], {KA['ws']}")
    a("s_mov_b32 s30, 0xffff0000")
    a("v_lshrrev_b32 v1, 4, v0")
    a("v_and_b32 v2, 15, v0")
    a("v_mul_u32_u24 v3, 1152, v1")
    a("v_lshl_add_u32 v3, v2, 3, v3")
    a("s_mul_i32 s21, s2, 18432")
    a("v_lshlrev_b32 v5, 4, v2")
    a("s_waitcnt lgkmcnt(0)")
    srd(a, 4, 12, G.ACTSZ, G.X1)
    srd(a, 8, 12, 13824, G.MODF)
    for i in range(9):
        a(f"buffer_load_dwordx2 v[{8+2*i}:{9+2*i}], v3, s[4:7], s21 offen offset:{128*i}")
    a(f"s_movk_i32 s22, {3*2304}")
    a(f"s_movk_i32 s23, {4*2304}")
    SB = 72; CB = 108
    for i in range(9):
        a(f"buffer_load_dwordx4 v[{SB+4*i}:{SB+4*i+3}], v5, s[8:11], s22 offen offset:{256*i}")
        a(f"buffer_load_dwordx4 v[{CB+4*i}:{CB+4*i+3}], v5, s[8:11], s23 offen offset:{256*i}")
    srd(a, 16, 12, G.ACTSZ, G.H2)
    a("v_lshrrev_b32 v4, 1, v2")
    a("v_lshlrev_b32 v4, 9, v4")
    a("v_lshl_add_u32 v4, v1, 4, v4")
    a("v_and_b32 v6, 1, v2")
    a("v_lshl_add_u32 v4, v6, 3, v4")
    a("s_lshr_b32 s24, s2, 1")
    a("s_mul_i32 s24, s24, 36864")
    a("s_and_b32 s25, s2, 1")
    a("s_lshl_b32 s25, s25, 8")
    a("s_add_u32 s24, s24, s25")
    a("s_waitcnt vmcnt(18)")
    U = 28; W = 64
    G.ln_core(a, 8, U, W)
    a("s_waitcnt vmcnt(0)")
    for i in range(18):
        u = U+2*i
        a(f"v_pk_fma_f32 v[{u}:{u+1}], v[{u}:{u+1}], v[{W+4}:{W+5}], v[{W+6}:{W+7}] op_sel_hi:[1,0,0]")
        a(f"v_cvt_pk_bf16_f32 v{u}, v{u}, v{u+1}")
        a(f"v_and_b32 v{u+1}, s30, v{u}")
        a(f"v_lshlrev_b32 v{u}, 16, v{u}")
        a(f"v_pk_fma_f32 v[{u}:{u+1}], v[{u}:{u+1}], v[{CB+2*i}:{CB+2*i+1}], v[{SB+2*i}:{SB+2*i+1}]")
        a(f"v_cvt_pk_bf16_f32 v{8+i}, v{u}, v{u+1}")
        if i % 2 == 1:
            j = i // 2
            a(f"buffer_store_dwordx2 v[{8+2*j}:{9+2*j}], v4, s[16:19], s24 offen")
            a("s_add_u32 s24, s24, 4096")
    a("K4B_END:")
    a("s_endpgm")
    G.kernels.append(("k4b_kernel", 128, 256, 0, 144, 32, a))

def gen_k5():
    KA, srd, f2u = G.KA, G.srd, G.f2u
    a = Asm(); vm = VM(a)
    HF = 8
    ACC = 152
    FR = 216; NFR = 4
    AD = 232
    TMP = 236
    VG, VU, VB, VST = 248, 249, 250, 251
    SLOT = 24576
    a("s_cmp_ge_u32 s2, 256")
    a("s_cbranch_scc1 K5_END")
    a(f"s_load_dwordx2 s[12:13], s[0:1], {KA['ws']}")
    a(f"s_load_dwordx4 s[36:39], s[0:1], {KA['wg']}")
    a("v_and_b32 v1, 63, v0")
    a("v_lshrrev_b32 v2, 6, v0")
    a("v_readfirstlane_b32 s20, v2")
    a("s_and_b32 s21, s2, 7")
    a("s_lshr_b32 s22, s2, 3")
    a("s_and_b32 s23, s22, 3")
    a("s_lshr_b32 s22, s22, 2")
    a("s_lshl_b32 s24, s22, 3")
    a("s_add_u32 s24, s24, s20")
    a("s_mul_i32 s25, s24, 36864")
    a("v_lshrrev_b32 v2, 3, v1")
    a("v_bfe_u32 v3, v1, 4, 1")
    a("v_lshlrev_b32 v3, 1, v3")
    a("v_and_b32 v4, 7, v1")
    a("v_xor_b32 v4, v4, v3")
    a("v_mul_u32_u24 v2, 9216, v2")
    a(f"v_lshl_add_u32 v{VG}, v4, 4, v2")
    a("v_xor_b32 v4, 4, v4")
    a(f"v_lshl_add_u32 v{VU}, v4, 4, v2")
    a("s_cmp_lt_u32 s20, 4")
    a("s_cselect_b64 vcc, -1, 0")
    a(f"v_cndmask_b32 v{VB}, v{VU}, v{VG}, vcc")
    a(f"s_mul_i32 s26, s20, {8*9216}")
    a("s_add_u32 s27, s20, 8")
    a("s_sub_u32 s28, s20, 4")
    a("s_cmp_lt_u32 s20, 4")
    a("s_cselect_b32 s27, s27, s28")
    a(f"s_mul_i32 s27, s27, {8*9216}")
    a("s_add_u32 s28, s20, 4")
    a(f"s_mul_i32 s28, s28, {8*9216}")
    a("s_mul_i32 s29, s21, 1152")
    a("s_lshl_b32 s31, s23, 8")
    a("s_add_u32 s31, s31, s29")
    a("s_add_u32 s29, s29, 1024")
    a("s_lshl_b32 s32, s20, 10")
    a("v_lshlrev_b32 v5, 4, v1")
    a("s_waitcnt lgkmcnt(0)")
    srd(a, 4, 36, 576*9216)
    srd(a, 8, 38, 576*9216)
    a("s_cmp_lt_u32 s20, 4")
    a("s_cselect_b32 s40, s36, s38")
    a("s_cselect_b32 s41, s37, s39")
    a(f"s_mov_b32 s42, {576*9216}")
    a("s_mov_b32 s43, 0x20000")
    srd(a, 16, 12, G.ACTSZ, G.H2)
    srd(a, 44, 12, 2048*4608*2, G.ACT)
    def dma(c):
        p, kc = c // 6, c % 6
        slot = c % 6
        colreg = "s29" if p == 2 else "s31"
        add = kc*96*9216 + (128 if p == 1 else 0)
        for i, (sr, vo, rr) in enumerate(((4, VG, "s26"), (40, VB, "s27"), (8, VU, "s28"))):
            a(f"s_add_u32 s33, {rr}, {colreg}")
            if add: a(f"s_add_u32 s33, s33, {add}")
            a(f"s_add_u32 m0, s32, {slot*SLOT + i*8192}")
            a(f"buffer_load_dwordx4 v{vo}, s[{sr}:{sr+3}], s33 offen lds")
            vm.issue(('w', c))
    def h2load(s):
        a(f"buffer_load_dwordx4 v[{HF+4*s}:{HF+4*s+3}], v5, s[16:19], s25 offen offset:{(s%4)*1024}")
        vm.issue(('h', s))
        if s % 4 == 3: a("s_add_u32 s25, s25, 4096")
    for c in range(5):
        dma(c)
        for s in range(6*c, 6*c+6): h2load(s)
    for s in range(30, 36): h2load(s)
    a("v_lshrrev_b32 v2, 5, v1")
    a("v_bfe_u32 v3, v1, 4, 1")
    a("v_bfe_u32 v4, v1, 2, 2")
    a("v_lshl_add_u32 v6, v2, 3, v4")
    a("v_lshlrev_b32 v6, 7, v6")
    a("v_mul_u32_u24 v7, 12288, v3")
    a("v_add_u32 v6, v6, v7")
    a("v_and_b32 v7, 3, v1")
    a("v_lshl_add_u32 v6, v7, 3, v6")
    a("v_lshrrev_b32 v4, 1, v4")
    a("v_lshl_add_u32 v4, v3, 1, v4")
    for t in range(4):
        a(f"v_xor_b32 v7, {t}, v4")
        a(f"v_lshl_add_u32 v{AD+t}, v7, 5, v6")
    a("v_xor_b32 v7, s23, v4")
    a(f"v_lshl_add_u32 v{TMP+11}, v7, 5, v6")
    a("v_bfe_u32 v7, v1, 4, 1")
    a(f"v_mul_u32_u24 v{VST}, 147456, v7")
    a(f"v_lshl_add_u32 v{VST}, v2, 8, v{VST}")
    a("v_and_b32 v7, 15, v1")
    a(f"v_lshl_add_u32 v{VST}, v7, 4, v{VST}")
    a("s_mul_i32 s34, s24, 294912")
    a("s_mul_i32 s35, s21, 18432")
    a("s_add_u32 s34, s34, s35")
    a("s_lshl_b32 s35, s23, 12")
    a("s_add_u32 s35, s35, s34")
    a("s_lshl_b32 s33, s23, 9")
    a("s_add_u32 s34, s34, s33")
    a("s_add_u32 s34, s34, 16384")
    a(f"s_mov_b32 s48, {f2u(-G.LOG2E):#x}")
    seq = []
    for c in range(18):
        p = c // 6
        for t in (range(4) if p < 2 else [0]):
            for s6 in range(6): seq.append((c, t, s6))
    basepair = [0]
    fillers = []
    def rd(idx):
        c, t, s6 = seq[idx]
        slot = c % 6; pr = slot // 2
        if pr != basepair[0]:
            d = (pr - basepair[0]) * 2 * SLOT
            for tt in range(4):
                a(f"v_add_u32 v{AD+tt}, {d & 0xffffffff:#x}, v{AD+tt}")
            a(f"v_add_u32 v{TMP+11}, {d & 0xffffffff:#x}, v{TMP+11}")
            basepair[0] = pr
        f = FR + 4*(idx % NFR)
        base = AD + t if c < 12 else TMP + 11
        off = (slot % 2)*SLOT + s6*2048
        a(f"ds_read_b64_tr_b16 v[{f}:{f+1}], v{base} offset:{off}")
        a(f"ds_read_b64_tr_b16 v[{f+2}:{f+3}], v{base} offset:{off+512}")
    def epilogue(p, t):
        A = ACC + 16*t; T = TMP
        L = []
        for h in range(2):
            for j in range(4): L.append(f"v_mul_f32 v{T+j}, s48, v{A+4*h+j}")
            for j in range(4): L.append(f"v_exp_f32 v{T+j}, v{T+j}")
            for j in range(4): L.append(f"v_mul_f32 v{A+4*h+j}, v{A+4*h+j}, v{A+8+4*h+j}")
            for j in range(4): L.append(f"v_add_f32 v{T+j}, 1.0, v{T+j}")
            for j in range(4): L.append(f"v_rcp_f32 v{T+j}, v{T+j}")
            L.append("s_nop 0")
            for j in range(4): L.append(f"v_mul_f32 v{A+4*h+j}, v{A+4*h+j}, v{T+j}")
            L.append(f"v_cvt_pk_bf16_f32 v{T+4+2*h}, v{A+4*h}, v{A+4*h+1}")
            L.append(f"v_cvt_pk_bf16_f32 v{T+5+2*h}, v{A+4*h+2}, v{A+4*h+3}")
        if p < 2:
            L.append(('st', f"buffer_store_dwordx4 v[{T+4}:{T+7}], v{VST}, s[44:47], s35 offen offset:{(p*4+t)*512}"))
        else:
            L.append(('st', f"buffer_store_dwordx4 v[{T+4}:{T+7}], v{VST}, s[44:47], s34 offen"))
        return [(t, x) for x in L]
    def emit_fill(n):
        for _ in range(min(n, len(fillers))):
            t, x = fillers.pop(0)
            if isinstance(x, tuple): a(x[1]); vm.issue(('st',))
            else: a(x)
    vm.wait(('w', 0))
    a("s_barrier")
    PF = 3
    for i in range(PF): rd(i)
    pending = []
    for idx, (c, t, s6) in enumerate(seq):
        p = c // 6; s = (c % 6)*6 + s6
        if idx + PF < len(seq): rd(idx + PF)
        if p == 0 and t == 0: vm.wait(('h', s))
        first = (c % 6 == 0 and s6 == 0)
        if first:
            while pending and any(tt == t for tt, _ in pending[0][1]):
                fillers.extend(pending.pop(0)[1])
            while any(tt == t for tt, _ in fillers): emit_fill(1)
        rem = min(PF, len(seq) - 1 - idx)
        a(f"s_waitcnt lgkmcnt({2*rem})")
        f = FR + 4*(idx % NFR)
        cc = "0" if first else f"v[{ACC+16*t}:{ACC+16*t+15}]"
        a(f"v_mfma_f32_32x32x16_bf16 v[{ACC+16*t}:{ACC+16*t+15}], v[{f}:{f+3}], v[{HF+4*s}:{HF+4*s+3}], {cc}")
        if c % 6 == 5 and s6 == 5: pending.append((idx + 2, epilogue(p, t)))
        while pending and pending[0][0] <= idx: fillers.extend(pending.pop(0)[1])
        emit_fill(6)
        if t == 0 and s6 == 1 and c + 1 < 18:
            vm.wait(('w', c + 1))
            a("s_barrier")
            if c + 5 < 18: dma(c + 5)
    for _, L in pending: fillers.extend(L)
    emit_fill(10**6)
    a("K5_END:")
    a("s_endpgm")
    G.kernels.append(("k5_kernel", 256, 512, 6*SLOT, 256, 56, a))

def gen_k6():
    KA, srd, f2u = G.KA, G.srd, G.f2u
    a = Asm(); vm = VM(a)
    SLOT = 36864
    ACC = 8
    BF = 80; NB = 8
    FR = 144; NFR = 6
    AD = 168
    DV = 172
    a("s_cmp_ge_u32 s2, 256")
    a("s_cbranch_scc1 K6_END")
    a(f"s_load_dwordx2 s[12:13], s[0:1], {KA['ws']}")
    a(f"s_load_dwordx2 s[4:5], s[0:1], {KA['wd']}")
    a(f"s_load_dwordx2 s[40:41], s[0:1], {KA['out']}")
    a("s_mov_b32 s30, 0xffff0000")
    a("v_and_b32 v1, 63, v0")
    a("v_lshrrev_b32 v2, 6, v0")
    a("v_readfirstlane_b32 s20, v2")
    a("s_and_b32 s21, s2, 7")
    a("s_lshr_b32 s22, s21, 1")
    a("s_and_b32 s21, s21, 1")
    a("s_lshr_b32 s23, s2, 3")
    a("s_and_b32 s24, s23, 3")
    a("s_lshr_b32 s23, s23, 2")
    a("s_lshl_b32 s21, s21, 3")
    a("s_add_u32 s23, s23, s21")
    a("s_lshl_b32 s25, s23, 3")
    a("s_lshl_b32 s26, s20, 1")
    a("s_add_u32 s25, s25, s26")
    a("s_mul_i32 s26, s25, 147456")
    a("s_mul_i32 s27, s22, 36864")
    a("s_add_u32 s26, s26, s27")
    a("v_lshlrev_b32 v5, 4, v1")
    a("v_add_u32 v6, 147456, v5")
    for i in range(9):
        a(f"v_add_u32 v2, {64*i}, v1")
        a("v_mul_u32_u24 v3, 3641, v2")
        a("v_lshrrev_b32 v3, 16, v3")
        a("v_mul_u32_u24 v4, 18, v3")
        a("v_sub_u32 v2, v2, v4")
        a("v_mul_u32_u24 v3, 1152, v3")
        a(f"v_lshl_add_u32 v{DV+i}, v2, 4, v3")
    a("s_mul_i32 s27, s22, 1152")
    a("s_lshl_b32 s28, s20, 5")
    a("s_add_u32 s27, s27, s28")
    a("s_mul_i32 s27, s27, 1152")
    a("s_mul_i32 s28, s24, 288")
    a("s_add_u32 s27, s27, s28")
    a("s_mul_i32 s28, s20, 9216")
    a("s_waitcnt lgkmcnt(0)")
    srd(a, 4, 4, 4608*1152)
    srd(a, 8, 12, 2048*4608*2, G.ACT)
    def dma(c):
        for i in range(9):
            a(f"s_add_u32 m0, s28, {(c % 4)*SLOT + i*1024}")
            a(f"buffer_load_dwordx4 v{DV+i}, s[4:7], s27 offen lds")
            vm.issue(('w', c))
        a(f"s_add_u32 s27, s27, {128*1152}")
    def bload(st):
        b = BF + 8*(st % NB)
        a(f"buffer_load_dwordx4 v[{b}:{b+3}], v5, s[8:11], s26 offen offset:{(st%4)*1024}")
        a(f"buffer_load_dwordx4 v[{b+4}:{b+7}], v6, s[8:11], s26 offen offset:{(st%4)*1024}")
        vm.issue(('b', st)); vm.issue(('b', st))
        if st % 4 == 3: a("s_add_u32 s26, s26, 4096")
    dma(0)
    for st in range(4): bload(st)
    dma(1)
    for st in range(4, 7): bload(st)
    dma(2)
    a("v_lshrrev_b32 v2, 5, v1")
    a("v_bfe_u32 v3, v1, 4, 1")
    a("v_bfe_u32 v4, v1, 2, 2")
    a("v_lshl_add_u32 v4, v3, 2, v4")
    a("v_lshl_add_u32 v4, v2, 4, v4")
    a("v_mul_u32_u24 v4, 288, v4")
    a("v_and_b32 v7, 3, v1")
    a(f"v_lshl_add_u32 v{AD}, v7, 3, v4")
    for s in range(1, 4): a(f"v_add_u32 v{AD+s}, {s*SLOT}, v{AD}")
    seq = [(st, dt) for st in range(36) for dt in range(9)]
    def rd(idx):
        st, dt = seq[idx]
        f = FR + 4*(idx % NFR)
        base = AD + (st // 4) % 4
        off = (st % 4)*9216 + dt*32
        a(f"ds_read_b64_tr_b16 v[{f}:{f+1}], v{base} offset:{off}")
        a(f"ds_read_b64_tr_b16 v[{f+2}:{f+3}], v{base} offset:{off+2304}")
    vm.wait(('w', 0))
    a("s_barrier")
    PF = 4
    for i in range(PF): rd(i)
    for idx, (st, dt) in enumerate(seq):
        if idx + PF < len(seq): rd(idx + PF)
        if dt == 0: vm.wait(('b', st))
        rem = min(PF, len(seq) - 1 - idx)
        a(f"s_waitcnt lgkmcnt({2*rem})")
        f = FR + 4*(idx % NFR)
        b = BF + 8*(st % NB)
        for rt in range(2):
            A = ACC + 4*(rt*9 + dt)
            cc = "0" if st == 0 else f"v[{A}:{A+3}]"
            a(f"v_mfma_f32_16x16x32_bf16 v[{A}:{A+3}], v[{f}:{f+3}], v[{b+4*rt}:{b+4*rt+3}], {cc}")
        if dt == 1 and st + 7 < 36: bload(st + 7)
        c = st // 4
        if st % 4 == 0 and dt == 2 and c + 1 < 9:
            vm.wait(('w', c + 1))
            a("s_barrier")
            if c + 3 < 9: dma(c + 3)
    srd(a, 8, 12, 64*327680, G.PART)
    srd(a, 16, 12, 32768, G.FLG)
    srd(a, 44, 12, G.ACTSZ, G.X1)
    srd(a, 40, 40, G.ACTSZ)
    srd(a, 48, 12, 13824, G.MODF)
    a("s_lshl_b32 s31, s23, 2")
    a("s_add_u32 s31, s31, s24")
    a("s_mul_i32 s32, s31, 327680")
    a("s_mul_i32 s33, s20, 5120")
    a("s_add_u32 s32, s32, s33")
    a("s_mul_i32 s33, s22, 20480")
    a("s_add_u32 s33, s33, s32")
    a("s_mul_i32 s34, s22, 81920")
    a("s_add_u32 s34, s34, s32")
    a("s_lshl_b32 s35, s31, 2")
    a("s_add_u32 s35, s35, s20")
    a("s_lshl_b32 s35, s35, 7")
    a("v_and_b32 v2, 15, v1")
    a("v_mul_u32_u24 v2, 1152, v2")
    a("v_lshrrev_b32 v3, 4, v1")
    a("v_lshl_add_u32 v2, v3, 3, v2")
    a("v_lshlrev_b32 v3, 4, v3")
    a("s_mul_i32 s36, s25, 18432")
    a("s_mul_i32 s37, s24, 288")
    a("s_add_u32 s36, s36, s37")
    a("s_add_u32 s37, s36, 18432")
    a("s_mul_i32 s38, s24, 576")
    a(f"s_add_u32 s38, s38, {5*2304}")
    a("v_mov_b32 v4, 0")
    a("v_mov_b32 v7, 1")
    for kq in range(4):
        if kq < 3:
            a(f"s_cmp_lg_u32 s22, {kq}")
            a(f"s_cbranch_scc1 K6_V{kq+1}")
        own = [u for u in range(18) if u % 4 == kq]
        for u in range(18):
            if u % 4 == kq: continue
            a(f"s_add_u32 s39, s33, {(u % 4)*81920 + (u // 4)*1024}")
            a(f"buffer_store_dwordx4 v[{ACC+4*u}:{ACC+4*u+3}], v5, s[8:11], s39 offen sc1")
        XE = 80; GE = 92; RX = 112
        for i, u in enumerate(own):
            rt, dt = u // 9, u % 9
            a(f"buffer_load_dwordx2 v[{XE+2*i}:{XE+2*i+1}], v2, s[44:47], {'s37' if rt else 's36'} offen offset:{32*dt}")
            a(f"buffer_load_dwordx4 v[{GE+4*i}:{GE+4*i+3}], v3, s[48:51], s38 offen offset:{64*dt}")
        a(f"s_waitcnt vmcnt({2*len(own)})")
        a("s_mov_b64 s[52:53], exec")
        a("s_mov_b64 exec, 1")
        a("buffer_atomic_add v7, v4, s[16:19], s35 offen sc1")
        a("s_mov_b32 s54, 0")
        a(f"K6_POLL{kq}:")
        a("buffer_load_dword v6, v4, s[16:19], s35 offen sc1")
        a("s_waitcnt vmcnt(0)")
        a("v_readfirstlane_b32 s39, v6")
        a("s_cmp_ge_u32 s39, 4")
        a(f"s_cbranch_scc1 K6_GO{kq}")
        a("s_sleep 1")
        a("s_add_u32 s54, s54, 1")
        a("s_cmp_lt_u32 s54, 0x40000")
        a(f"s_cbranch_scc1 K6_POLL{kq}")
        a(f"K6_GO{kq}:")
        a("s_mov_b64 exec, s[52:53]")
        srcs = [s for s in range(4) if s != kq]
        for i, u in enumerate(own):
            for j, s in enumerate(srcs):
                r = RX + 12*i + 4*j
                a(f"s_add_u32 s39, s34, {s*20480 + i*1024}")
                a(f"buffer_load_dwordx4 v[{r}:{r+3}], v5, s[8:11], s39 offen sc1")
        for i, u in enumerate(own):
            rt, dt = u // 9, u % 9
            A = ACC + 4*u; r = RX + 12*i
            a(f"s_waitcnt vmcnt({3*(len(own)-1-i) + i})")
            for d in range(2):
                a(f"v_pk_add_f32 v[{A+2*d}:{A+2*d+1}], v[{A+2*d}:{A+2*d+1}], v[{r+2*d}:{r+2*d+1}]")
                a(f"v_pk_add_f32 v[{r+4+2*d}:{r+5+2*d}], v[{r+4+2*d}:{r+5+2*d}], v[{r+8+2*d}:{r+9+2*d}]")
                a(f"v_pk_add_f32 v[{A+2*d}:{A+2*d+1}], v[{A+2*d}:{A+2*d+1}], v[{r+4+2*d}:{r+5+2*d}]")
                a(f"v_lshlrev_b32 v{r}, 16, v{XE+2*i+d}")
                a(f"v_and_b32 v{r+1}, s30, v{XE+2*i+d}")
                a(f"v_pk_fma_f32 v[{r}:{r+1}], v[{A+2*d}:{A+2*d+1}], v[{GE+4*i+2*d}:{GE+4*i+2*d+1}], v[{r}:{r+1}]")
                a(f"v_cvt_pk_bf16_f32 v{XE+2*i+d}, v{r}, v{r+1}")
            a(f"buffer_store_dwordx2 v[{XE+2*i}:{XE+2*i+1}], v2, s[40:43], {'s37' if rt else 's36'} offen offset:{32*dt}")
        a("s_endpgm")
        if kq < 3: a(f"K6_V{kq+1}:")
    a("K6_END:")
    a("s_endpgm")
    G.kernels.append(("k6_kernel", 256, 256, 4*SLOT, 184, 56, a))
```

```python
import sys, math
sys.path.insert(0, 'gen')
from asmlib import Asm

NAME = "adaLN_cond__grouped_kv_mqa__swiglu_ffn__prompt"
KA = dict(x=0, wq=8, wk=16, wv=24, wo=32, wg=48, wu=56, wd=64, c=72, wmod=80, out=88, dbg=96, ws=104)
MODP = 0x0; MODF = 0x10000; KN = 0x14000; FLG = 0x18000
XN = 0x100000; QB = 0x400000; KVI = 0x700000; OB = 0x800000; X1 = 0xB00000; H2 = 0xE00000
ACT = 0x1100000; PART = 0x2400000
ROWB = 1152
ACTSZ = 2048 * 576 * 2
KVBLK = 18944
KVSZ = 8 * KVBLK
LOG2E = 1.4426950408889634
def f2u(x):
    import struct
    return struct.unpack('<I', struct.pack('<f', x))[0]

kernels = []

def srd(a, d, plo, size, off=0):
    if off:
        a(f"s_add_u32 s{d}, s{plo}, {off}")
        a(f"s_addc_u32 s{d+1}, s{plo+1}, 0")
    else:
        if d != plo:
            a(f"s_mov_b32 s{d}, s{plo}")
            a(f"s_mov_b32 s{d+1}, s{plo+1}")
    a(f"s_mov_b32 s{d+2}, {size}")
    a(f"s_mov_b32 s{d+3}, 0x20000")

def row16_allreduce_add(a, v, t):
    a(f"v_add_f32_dpp v{v}, v{v}, v{v} quad_perm:[1,0,3,2] row_mask:0xf bank_mask:0xf")
    a(f"v_add_f32_dpp v{v}, v{v}, v{v} quad_perm:[2,3,0,1] row_mask:0xf bank_mask:0xf")
    a(f"v_add_f32_dpp v{v}, v{v}, v{v} row_half_mirror row_mask:0xf bank_mask:0xf")
    a(f"v_add_f32_dpp v{v}, v{v}, v{v} row_mirror row_mask:0xf bank_mask:0xf")

def bf16_round(a, v):
    a(f"v_cvt_pk_bf16_f32 v{v}, v{v}, v{v}")
    a(f"v_lshlrev_b32 v{v}, 16, v{v}")

def ln_core(a, X, U, W):
    for i in range(18):
        a(f"v_lshlrev_b32 v{U+2*i}, 16, v{X+i}")
        a(f"v_and_b32 v{U+2*i+1}, s30, v{X+i}")
    a(f"v_pk_add_f32 v[{W}:{W+1}], v[{U}:{U+1}], v[{U+2}:{U+3}]")
    for i in range(2, 18):
        a(f"v_pk_add_f32 v[{W}:{W+1}], v[{W}:{W+1}], v[{U+2*i}:{U+2*i+1}]")
    a(f"v_add_f32 v{W}, v{W}, v{W+1}")
    row16_allreduce_add(a, W, W+1)
    a(f"v_mul_f32 v{W}, {f2u(-1.0/576):#x}, v{W}")
    a(f"v_mov_b32 v{W+2}, 0")
    a(f"v_mov_b32 v{W+3}, 0")
    for i in range(18):
        a(f"v_pk_add_f32 v[{W+4}:{W+5}], v[{U+2*i}:{U+2*i+1}], v[{W}:{W+1}] op_sel_hi:[1,0]")
        a(f"v_pk_fma_f32 v[{W+2}:{W+3}], v[{W+4}:{W+5}], v[{W+4}:{W+5}], v[{W+2}:{W+3}]")
    a(f"v_add_f32 v{W+2}, v{W+2}, v{W+3}")
    row16_allreduce_add(a, W+2, W+3)
    a(f"v_mul_f32 v{W+2}, {f2u(1.0/576):#x}, v{W+2}")
    bf16_round(a, W+2)
    a(f"v_add_f32 v{W+2}, {f2u(1e-5):#x}, v{W+2}")
    bf16_round(a, W+2)
    a(f"v_sqrt_f32 v{W+2}, v{W+2}")
    bf16_round(a, W+2)
    a(f"v_rcp_f32 v{W+4}, v{W+2}")
    bf16_round(a, W)
    a(f"v_mul_f32 v{W+6}, v{W}, v{W+4}")

def gen_k1():
    a = Asm()
    a("s_cmp_ge_u32 s2, 290")
    a("s_cbranch_scc1 K1_END")
    a(f"s_load_dwordx2 s[12:13], s[0:1], {KA['ws']}")
    a("s_mov_b32 s30, 0xffff0000")
    a("s_cmp_ge_u32 s2, 162")
    a("s_cbranch_scc1 K1_LN")
    a(f"s_load_dwordx2 s[4:5], s[0:1], {KA['wmod']}")
    a(f"s_load_dwordx2 s[8:9], s[0:1], {KA['c']}")
    a("s_mul_i32 s20, s2, 1214")
    a("s_lshr_b32 s20, s20, 16")
    a("s_mul_i32 s21, s20, 54")
    a("s_sub_u32 s21, s2, s21")
    a("v_and_b32 v1, 7, v0")
    a("v_lshrrev_b32 v2, 3, v0")
    a("s_mul_i32 s22, s20, 192")
    a("v_add_u32 v2, s22, v2")
    a("v_lshlrev_b32 v3, 1, v2")
    a("v_mul_u32_u24 v4, 6912, v2")
    a("v_lshlrev_b32 v1, 4, v1")
    a("v_add_u32 v4, v4, v1")
    a("s_lshl_b32 s24, s21, 7")
    a("s_waitcnt lgkmcnt(0)")
    srd(a, 4, 4, 576*3456*2)
    srd(a, 8, 8, 1152)
    for i in range(6):
        a(f"buffer_load_ushort v{10+2*i}, v3, s[8:11], 0 offen offset:{64*i}")
    for i in range(6):
        a(f"buffer_load_dwordx4 v[{24+4*i}:{27+4*i}], v4, s[4:7], s24 offen")
        if i < 5: a(f"s_add_u32 s24, s24, {32*6912}")
    srd(a, 16, 12, 3*13824, MODP)
    for i in range(6):
        a(f"s_waitcnt vmcnt({11-i})")
        c = 10+2*i
        a(f"v_lshlrev_b32 v{c}, 16, v{c}")
        a(f"v_mul_f32 v{c+1}, {f2u(-LOG2E):#x}, v{c}")
        a(f"v_exp_f32 v{c+1}, v{c+1}")
        a(f"v_add_f32 v{c+1}, 1.0, v{c+1}")
        a(f"v_rcp_f32 v{c+1}, v{c+1}")
        a(f"v_mul_f32 v{c}, v{c}, v{c+1}")
        bf16_round(a, c)
    for j in range(8): a(f"v_mov_b32 v{48+j}, 0")
    for i in range(6):
        a(f"s_waitcnt vmcnt({5-i})")
        for d in range(4):
            w = 24+4*i+d
            a(f"v_lshlrev_b32 v56, 16, v{w}")
            a(f"v_and_b32 v57, s30, v{w}")
            a(f"v_pk_fma_f32 v[{48+2*d}:{49+2*d}], v[56:57], v[{10+2*i}:{11+2*i}], v[{48+2*d}:{49+2*d}] op_sel_hi:[1,0,1]")
    for j in range(4):
        a(f"v_permlane32_swap_b32 v{48+j}, v{52+j}")
    for j in range(4):
        a(f"v_add_f32 v{48+j}, v{48+j}, v{52+j}")
    for j in range(2):
        a(f"v_permlane16_swap_b32 v{48+j}, v{50+j}")
    for j in range(2):
        a(f"v_add_f32 v{48+j}, v{48+j}, v{50+j}")
    for j in range(2):
        a(f"v_add_f32_dpp v{48+j}, v{48+j}, v{48+j} row_ror:8 row_mask:0xf bank_mask:0xf")
    a("v_and_b32 v5, 7, v0")
    a("v_lshlrev_b32 v5, 5, v5")
    a("v_bfe_u32 v6, v0, 4, 2")
    a("v_lshl_add_u32 v5, v6, 3, v5")
    a("v_lshrrev_b32 v6, 6, v0")
    a("v_lshl_add_u32 v5, v6, 8, v5")
    a("ds_write_b64 v5, v[48:49]")
    a("s_waitcnt lgkmcnt(0)")
    a("s_barrier")
    a("v_readfirstlane_b32 s25, v0")
    a("s_cmp_ge_u32 s25, 64")
    a("s_cbranch_scc1 K1_FLG")
    a("v_lshlrev_b32 v5, 2, v0")
    a("ds_read_b32 v48, v5")
    a("ds_read_b32 v49, v5 offset:256")
    a("ds_read_b32 v50, v5 offset:512")
    a("ds_read_b32 v51, v5 offset:768")
    a("s_mul_i32 s26, s20, 13824")
    a("s_lshl_b32 s27, s21, 8")
    a("s_add_u32 s26, s26, s27")
    a("s_waitcnt lgkmcnt(0)")
    a("v_add_f32 v48, v48, v49")
    a("v_add_f32 v50, v50, v51")
    a("v_add_f32 v48, v48, v50")
    a("buffer_store_dword v48, v5, s[16:19], s26 offen")
    a("s_endpgm")
    a("K1_FLG:")
    a("s_cmp_ge_u32 s2, 2")
    a("s_cbranch_scc1 K1_END")
    srd(a, 16, 12, 32768, FLG)
    a("s_mul_i32 s26, s2, 192")
    a("v_subrev_u32 v5, 64, v0")
    a("v_add_u32 v5, s26, v5")
    a("v_lshlrev_b32 v5, 7, v5")
    a("v_mov_b32 v6, 0")
    a("buffer_store_dword v6, v5, s[16:19], 0 offen")
    a("s_endpgm")
    a("K1_LN:")
    a(f"s_load_dwordx2 s[4:5], s[0:1], {KA['x']}")
    a("s_sub_u32 s20, s2, 162")
    a("v_lshrrev_b32 v1, 4, v0")
    a("v_and_b32 v2, 15, v0")
    a("v_mul_u32_u24 v3, 1152, v1")
    a("v_lshl_add_u32 v3, v2, 3, v3")
    a("s_mul_i32 s21, s20, 18432")
    a("s_waitcnt lgkmcnt(0)")
    srd(a, 4, 4, ACTSZ)
    for i in range(9):
        a(f"buffer_load_dwordx2 v[{8+2*i}:{9+2*i}], v3, s[4:7], s21 offen offset:{128*i}")
    srd(a, 16, 12, ACTSZ, XN)
    a("v_lshrrev_b32 v4, 1, v2")
    a("v_lshlrev_b32 v4, 8, v4")
    a("v_lshl_add_u32 v4, v1, 4, v4")
    a("v_and_b32 v5, 1, v2")
    a("v_lshl_add_u32 v4, v5, 3, v4")
    a("s_waitcnt vmcnt(0)")
    U = 28; W = 64
    ln_core(a, 8, U, W)
    for i in range(18):
        a(f"v_pk_fma_f32 v[{U+2*i}:{U+2*i+1}], v[{U+2*i}:{U+2*i+1}], v[{W+4}:{W+5}], v[{W+6}:{W+7}] op_sel_hi:[1,0,0]")
        a(f"v_cvt_pk_bf16_f32 v{8+i}, v{U+2*i}, v{U+2*i+1}")
        if i % 2 == 1:
            j = i // 2
            a(f"buffer_store_dwordx2 v[{8+2*j}:{9+2*j}], v4, s[16:19], s21 offen offset:{(j%2)*2048}")
            if j % 2 == 1: a("s_add_u32 s21, s21, 4096")
    a("K1_END:")
    a("s_endpgm")
    kernels.append(("k1_kernel", 290, 256, 1024, 72, 32, a))

K2_A = 110592; K2_S = K2_A + 2304
def gen_k2():
    a = Asm()
    a("s_cmp_ge_u32 s2, 224")
    a("s_cbranch_scc1 K2_END")
    a(f"s_load_dwordx2 s[12:13], s[0:1], {KA['ws']}")
    a(f"s_load_dwordx2 s[4:5], s[0:1], {KA['wq']}")
    a(f"s_load_dwordx4 s[40:43], s[0:1], {KA['wk']}")
    a("s_mov_b32 s30, 0xffff0000")
    a("v_and_b32 v1, 63, v0")
    a("v_lshrrev_b32 v2, 6, v0")
    a("v_readfirstlane_b32 s20, v2")
    a("s_and_b32 s21, s2, 7")
    a("s_lshr_b32 s22, s2, 3")
    a("s_mul_i32 s23, s22, 43")
    a("s_lshr_b32 s23, s23, 8")
    a("s_mul_i32 s24, s23, 6")
    a("s_sub_u32 s24, s22, s24")
    a("s_cmp_ge_u32 s22, 24")
    a("s_cselect_b32 s23, s24, s23")
    a("s_lshl_b32 s21, s21, 2")
    a("s_add_u32 s21, s21, s23")
    a("s_lshl_b32 s25, s21, 2")
    a("s_add_u32 s25, s25, s20")
    a("s_mul_i32 s26, s25, 18432")
    a("v_lshlrev_b32 v3, 4, v1")
    a("s_waitcnt lgkmcnt(0)")
    srd(a, 8, 12, ACTSZ, XN)
    srd(a, 16, 12, 3*13824, MODP)
    a("v_lshlrev_b32 v4, 4, v0")
    a("v_cmp_gt_u32 vcc, 144, v0")
    a("v_mov_b32 v5, 0x7fffffff")
    a("v_cndmask_b32 v4, v5, v4, vcc")
    a("s_movk_i32 s27, 13824")
    a("s_movk_i32 s28, 27648")
    a("buffer_load_dwordx4 v[100:103], v4, s[16:19], 0 offen")
    a("buffer_load_dwordx4 v[104:107], v4, s[16:19], s27 offen")
    a("buffer_load_dwordx4 v[108:111], v4, s[16:19], s28 offen")
    a("buffer_load_dwordx4 v[112:115], v4, s[16:19], 0 offen offset:2304")
    a("buffer_load_dwordx4 v[116:119], v4, s[16:19], s27 offen offset:2304")
    a("buffer_load_dwordx4 v[120:123], v4, s[16:19], s28 offen offset:2304")
    XF = 8
    for s in range(18):
        a(f"buffer_load_dwordx4 v[{XF+4*s}:{XF+4*s+3}], v3, s[8:11], s26 offen offset:{(s%4)*1024}")
        if s % 4 == 3: a("s_add_u32 s26, s26, 4096")
    a("s_cmp_ge_u32 s22, 24")
    a("s_cbranch_scc1 K2_KVLOAD")
    srd(a, 4, 4, 576*1152)
    for i3 in range(3):
        r, p, t = 80+i3, 84, 85
        a(f"v_add_u32 v{p}, {64*i3}, v1")
        a(f"v_mul_u32_u24 v{t}, 43691, v{p}")
        a(f"v_lshrrev_b32 v{t}, 19, v{t}")
        a(f"v_mul_u32_u24 v86, 12, v{t}")
        a(f"v_sub_u32 v{p}, v{p}, v86")
        a(f"v_bfe_u32 v86, v{t}, 3, 1")
        a(f"v_lshlrev_b32 v86, 1, v86")
        a(f"v_xor_b32 v{p}, v{p}, v86")
        a(f"v_lshlrev_b32 v{p}, 4, v{p}")
        a(f"v_mul_u32_u24 v{t}, 1152, v{t}")
        a(f"v_add_u32 v{r}, v{t}, v{p}")
    a("s_mul_i32 s27, s24, 192")
    a("s_mul_i32 s28, s20, 18432")
    a("s_add_u32 s27, s27, s28")
    a("s_mul_i32 s28, s20, 3072")
    for g in range(9):
        for i3 in range(3):
            a(f"s_add_u32 m0, s28, {g*12288 + i3*1024}")
            a(f"buffer_load_dwordx4 v{80+i3}, s[4:7], s27 offen lds")
        if g < 8: a(f"s_add_u32 s27, s27, {64*1152}")
    a("s_waitcnt vmcnt(45)")
    a("s_branch K2_MOD")
    a("K2_KVLOAD:")
    srd(a, 4, 40, 576*36)
    srd(a, 44, 42, 576*36)
    a("v_mul_u32_u24 v80, 36, v0")
    a("v_mul_u32_u24 v81, 48, v0")
    VIMG = 27776
    for m, sr in ((0, 4), (1, 44)):
        for it in range(3):
            b = 124 + 10*(3*m+it)
            a(f"s_movk_i32 s27, {9216*it}")
            a(f"buffer_load_dwordx4 v[{b}:{b+3}], v80, s[{sr}:{sr+3}], s27 offen")
            a(f"buffer_load_dwordx4 v[{b+4}:{b+7}], v80, s[{sr}:{sr+3}], s27 offen offset:16")
            a(f"buffer_load_dword v{b+8}, v80, s[{sr}:{sr+3}], s27 offen offset:32")
    a("s_waitcnt vmcnt(0)")
    for m in range(2):
        for it in range(3):
            b = 124 + 10*(3*m+it)
            if it == 2:
                a("v_cmp_gt_u32 vcc, 64, v0")
                a("s_and_saveexec_b64 s[46:47], vcc")
            o = m*VIMG + it*12288
            a(f"ds_write_b128 v81, v[{b}:{b+3}] offset:{o}")
            a(f"ds_write_b128 v81, v[{b+4}:{b+7}] offset:{o+16}")
            a(f"ds_write_b32 v81, v{b+8} offset:{o+32}")
            if it == 2:
                a("s_mov_b64 exec, s[46:47]")
    a("s_and_b32 s27, s2, 7")
    a("s_cmp_lg_u32 s24, 0")
    a("s_cbranch_scc1 K2_MOD")
    a("s_cmp_ge_u32 s27, 6")
    a("s_cbranch_scc1 K2_MOD")
    a("s_mul_i32 s28, s27, 2304")
    a("s_add_u32 s29, s28, 13824")
    a("s_add_u32 s31, s28, 27648")
    a("buffer_load_dwordx4 v[124:127], v4, s[16:19], s28 offen")
    a("buffer_load_dwordx4 v[128:131], v4, s[16:19], s29 offen")
    a("buffer_load_dwordx4 v[132:135], v4, s[16:19], s31 offen")
    srd(a, 44, 12, 13824, MODF)
    a("s_cmp_eq_u32 s27, 1")
    a("s_cselect_b32 s29, 1.0, 0")
    a("s_cmp_eq_u32 s27, 4")
    a("s_cselect_b32 s29, 1.0, s29")
    a("s_waitcnt vmcnt(0)")
    for j in range(4):
        a(f"v_add_f32 v{124+j}, v{124+j}, v{128+j}")
        a(f"v_add_f32 v{124+j}, v{124+j}, v{132+j}")
        bf16_round(a, 124+j)
        a(f"v_add_f32 v{124+j}, s29, v{124+j}")
        bf16_round(a, 124+j)
    a("buffer_store_dwordx4 v[124:127], v4, s[44:47], s28 offen")
    a("K2_MOD:")
    for j in range(4):
        a(f"v_add_f32 v{100+j}, v{100+j}, v{104+j}")
        a(f"v_add_f32 v{100+j}, v{100+j}, v{108+j}")
        bf16_round(a, 100+j)
        a(f"v_add_f32 v{112+j}, v{112+j}, v{116+j}")
        a(f"v_add_f32 v{112+j}, v{112+j}, v{120+j}")
        bf16_round(a, 112+j)
        a(f"v_add_f32 v{112+j}, 1.0, v{112+j}")
        bf16_round(a, 112+j)
    a("v_lshlrev_b32 v4, 4, v0")
    a("v_cmp_gt_u32 vcc, 144, v0")
    a("s_and_saveexec_b64 s[46:47], vcc")
    a(f"s_mov_b32 s27, {K2_A}")
    a("v_add_u32 v4, s27, v4")
    a("ds_write_b128 v4, v[112:115]")
    a("ds_write_b128 v4, v[100:103] offset:2304")
    a("s_mov_b64 exec, s[46:47]")
    a("s_waitcnt vmcnt(0) lgkmcnt(0)")
    a("s_barrier")
    a("v_lshrrev_b32 v5, 4, v1")
    a("v_lshlrev_b32 v6, 5, v5")
    a("v_add_u32 v6, s27, v6")
    for s in range(18):
        T = 100 + 16*(s % 2)
        a(f"ds_read_b128 v[{T}:{T+3}], v6 offset:{128*s}")
        a(f"ds_read_b128 v[{T+4}:{T+7}], v6 offset:{128*s+16}")
        a(f"ds_read_b128 v[{T+8}:{T+11}], v6 offset:{128*s+2304}")
        a(f"ds_read_b128 v[{T+12}:{T+15}], v6 offset:{128*s+2320}")
        if s > 0:
            mod_step(a, XF+4*(s-1), 100 + 16*((s-1) % 2), 4)
    mod_step(a, XF+4*17, 100 + 16*(17 % 2), 0)
    a("v_bfe_u32 v7, v1, 2, 2")
    a("v_lshl_add_u32 v7, v5, 3, v7")
    a("v_and_b32 v80, 3, v1")
    a("v_lshlrev_b32 v80, 3, v80")
    a("s_cmp_ge_u32 s22, 24")
    a("s_cbranch_scc1 K2_KV")
    a("v_mul_u32_u24 v81, 192, v7")
    a("v_add_u32 v81, v81, v80")
    a("v_and_b32 v82, 1, v5")
    a("v_lshlrev_b32 v82, 5, v82")
    a("v_add_u32 v83, v81, v82")
    a("v_sub_u32 v84, v81, v82")
    a("v_add_u32 v85, 0xd800, v83")
    a("v_add_u32 v86, 0xd800, v84")
    ACC = 140
    FR = 100
    nfr = 6
    seq = [(s, t) for s in range(18) for t in range(6)]
    def rd(idx):
        s, t = seq[idx]
        f = FR + 4*(idx % nfr)
        base = (83 if t % 2 == 0 else 84) + (2 if s >= 9 else 0)
        off = (s % 9)*6144 + t*32
        a(f"ds_read_b64_tr_b16 v[{f}:{f+1}], v{base} offset:{off}")
        a(f"ds_read_b64_tr_b16 v[{f+2}:{f+3}], v{base} offset:{off+768}")
    PF = 4
    for i in range(PF): rd(i)
    for idx, (s, t) in enumerate(seq):
        if idx + PF < len(seq): rd(idx + PF)
        rem = min(PF, len(seq) - 1 - idx)
        a(f"s_waitcnt lgkmcnt({2*rem})")
        f = FR + 4*(idx % nfr)
        c = "0" if s == 0 else f"v[{ACC+4*t}:{ACC+4*t+3}]"
        a(f"v_mfma_f32_16x16x32_bf16 v[{ACC+4*t}:{ACC+4*t+3}], v[{f}:{f+3}], v[{XF+4*s}:{XF+4*s+3}], {c}")
    srd(a, 16, 12, ACTSZ, QB)
    a("v_and_b32 v2, 15, v1")
    a("v_mul_u32_u24 v2, 1152, v2")
    a("v_lshl_add_u32 v2, v5, 3, v2")
    a("s_mul_i32 s26, s25, 18432")
    a("s_mul_i32 s27, s24, 192")
    a("s_add_u32 s26, s26, s27")
    a(f"s_mov_b32 s27, {f2u(18**-0.5*LOG2E):#x}")
    for t in range(6):
        c = ACC+4*t
        for j in range(4): a(f"v_mul_f32 v{c+j}, s27, v{c+j}")
        a(f"v_cvt_pk_bf16_f32 v{c}, v{c}, v{c+1}")
        a(f"v_cvt_pk_bf16_f32 v{c+1}, v{c+2}, v{c+3}")
        a(f"buffer_store_dwordx2 v[{c}:{c+1}], v2, s[16:19], s26 offen offset:{32*t}")
    a("s_endpgm")
    a("K2_KV:")
    a("v_mul_u32_u24 v81, 48, v7")
    a("v_add_u32 v81, v81, v80")
    seq = [(s, t) for s in range(18) for t in range(4)]
    def rd2(idx):
        s, t = seq[idx]
        f = FR + 4*(idx % nfr)
        off = s*1536 + (t % 2)*32 + (t // 2)*VIMG
        a(f"ds_read_b64_tr_b16 v[{f}:{f+1}], v81 offset:{off}")
        a(f"ds_read_b64_tr_b16 v[{f+2}:{f+3}], v81 offset:{off+192}")
    for i in range(PF): rd2(i)
    for idx, (s, t) in enumerate(seq):
        if idx + PF < len(seq): rd2(idx + PF)
        rem = min(PF, len(seq) - 1 - idx)
        a(f"s_waitcnt lgkmcnt({2*rem})")
        f = FR + 4*(idx % nfr)
        c = "0" if s == 0 else f"v[{ACC+4*t}:{ACC+4*t+3}]"
        if t < 2:
            a(f"v_mfma_f32_16x16x32_bf16 v[{ACC+4*t}:{ACC+4*t+3}], v[{f}:{f+3}], v[{XF+4*s}:{XF+4*s+3}], {c}")
        else:
            a(f"v_mfma_f32_16x16x32_bf16 v[{ACC+4*t}:{ACC+4*t+3}], v[{XF+4*s}:{XF+4*s+3}], v[{f}:{f+3}], {c}")
    srd(a, 16, 12, KVSZ, KVI)
    a("s_lshr_b32 s26, s25, 4")
    a(f"s_mul_i32 s26, s26, {KVBLK}")
    a("s_and_b32 s27, s25, 15")
    a("v_and_b32 v2, 15, v1")
    K0 = ACC; K1_ = ACC+4; V0 = ACC+8; V1 = ACC+12
    a(f"v_mul_f32 v90, v{K0}, v{K0}")
    for j in range(1, 4): a(f"v_fmac_f32 v90, v{K0+j}, v{K0+j}")
    a(f"v_mul_f32 v91, v{K1_}, v{K1_}")
    a(f"v_fmac_f32 v91, v{K1_+1}, v{K1_+1}")
    a("v_cmp_gt_u32 vcc, 16, v1")
    a("v_mov_b32 v92, 0")
    a("v_cndmask_b32 v91, v92, v91, vcc")
    a("v_add_f32 v90, v90, v91")
    a("v_mov_b32 v91, v90")
    a("v_permlane32_swap_b32 v90, v91")
    a("v_add_f32 v90, v90, v91")
    a("v_mov_b32 v91, v90")
    a("v_permlane16_swap_b32 v90, v91")
    a("v_add_f32 v90, v90, v91")
    for m in ("quad_perm:[1,0,3,2]", "quad_perm:[2,3,0,1]", "row_half_mirror", "row_mirror"):
        a(f"v_max_f32_dpp v90, v90, v90 {m} row_mask:0xf bank_mask:0xf")
    a(f"v_cvt_pk_bf16_f32 v{K0}, v{K0}, v{K0+1}")
    a(f"v_cvt_pk_bf16_f32 v{K0+1}, v{K0+2}, v{K0+3}")
    a(f"v_cvt_pk_bf16_f32 v{K1_}, v{K1_}, v{K1_+1}")
    a("s_lshr_b32 s28, s27, 1")
    a("s_lshl_b32 s28, s28, 10")
    a("s_and_b32 s29, s27, 1")
    a("s_lshl_b32 s29, s29, 8")
    a("s_add_u32 s28, s28, s29")
    a("s_add_u32 s28, s28, s26")
    a("v_lshrrev_b32 v93, 1, v5")
    a("v_lshlrev_b32 v93, 9, v93")
    a("v_lshl_add_u32 v93, v2, 4, v93")
    a("v_and_b32 v94, 1, v5")
    a("v_lshl_add_u32 v93, v94, 3, v93")
    a(f"buffer_store_dwordx2 v[{K0}:{K0+1}], v93, s[16:19], s28 offen")
    a("s_lshl_b32 s28, s27, 6")
    a("s_add_u32 s28, s28, s26")
    a("v_lshlrev_b32 v93, 2, v1")
    a("v_mov_b32 v92, 0x7fffffff")
    a("v_cndmask_b32 v93, v92, v93, vcc")
    a("s_add_u32 s28, s28, 8192")
    a(f"buffer_store_dword v{K1_}, v93, s[16:19], s28 offen")
    a(f"v_cvt_pk_bf16_f32 v{V0}, v{V0}, v{V0+1}")
    a(f"v_cvt_pk_bf16_f32 v{V0+1}, v{V0+2}, v{V0+3}")
    a(f"v_cvt_pk_bf16_f32 v{V1}, v{V1}, v{V1+1}")
    a(f"v_cvt_pk_bf16_f32 v{V1+1}, v{V1+2}, v{V1+3}")
    a("s_mul_i32 s28, s27, 608")
    a("s_add_u32 s28, s28, s26")
    a("s_add_u32 s28, s28, 9216")
    a("v_mul_u32_u24 v93, 304, v94")
    a("v_lshl_add_u32 v93, v2, 4, v93")
    a("v_lshrrev_b32 v94, 1, v5")
    a("v_lshl_add_u32 v93, v94, 3, v93")
    a(f"buffer_store_dwordx2 v[{V0}:{V0+1}], v93, s[16:19], s28 offen")
    a("v_mov_b32 v95, 0x3f803f80")
    a("v_cmp_eq_u32 vcc, 2, v2")
    a(f"v_cndmask_b32 v{V1}, v{V1}, v95, vcc")
    a(f"v_cndmask_b32 v{V1+1}, v{V1+1}, v95, vcc")
    a("v_cmp_gt_u32 vcc, 3, v2")
    a("v_cndmask_b32 v93, v92, v93, vcc")
    a(f"buffer_store_dwordx2 v[{V1}:{V1+1}], v93, s[16:19], s28 offen offset:256")
    srd(a, 16, 12, 512, KN)
    a("v_cmp_eq_u32 vcc, 0, v1")
    a("v_mov_b32 v93, 0")
    a("v_cndmask_b32 v93, v92, v93, vcc")
    a("s_lshl_b32 s28, s25, 2")
    a("buffer_store_dword v90, v93, s[16:19], s28 offen")
    a("K2_END:")
    a("s_endpgm")
    kernels.append(("k2_kernel", 224, 256, 115200, 192, 48, a))

def mod_step(a, F, T, wait):
    a(f"s_waitcnt lgkmcnt({wait})")
    for d in range(4):
        u = 132 + 2*d
        a(f"v_lshlrev_b32 v{u}, 16, v{F+d}")
        a(f"v_and_b32 v{u+1}, s30, v{F+d}")
        a(f"v_pk_fma_f32 v[{u}:{u+1}], v[{u}:{u+1}], v[{T+2*d}:{T+2*d+1}], v[{T+8+2*d}:{T+9+2*d}]")
        a(f"v_cvt_pk_bf16_f32 v{F+d}, v{u}, v{u+1}")

def emit(path, which=None):
    hdr = open(f"cdna_kernels/{NAME}.s.ref").read().split('\n')
    hdr = [l for l in hdr if l.startswith(';') and '@launch' not in l and 'Override' not in l and 'grid=ceil' not in l]
    out = '\n'.join(hdr) + '\n'
    for (n, g, b, lds, vg, sg, a) in kernels:
        out += f"; @launch kernel={n} grid=({g},1,1) block=({b},1,1) lds={lds}\n"
    out += '.amdgcn_target "amdgcn-amd-amdhsa--gfx950"\n.text\n'
    for (n, g, b, lds, vg, sg, a) in kernels:
        a.fix_hazards()
        out += f".globl {n}\n.p2align 8\n.type {n},@function\n{n}:\n" + a.text()
    out += '.section .rodata,"a"\n'
    for (n, g, b, lds, vg, sg, a) in kernels:
        acc = min(256, (vg + 3) // 4 * 4)
        out += f""".p2align 6
.amdhsa_kernel {n}
  .amdhsa_next_free_vgpr {vg}
  .amdhsa_next_free_sgpr {sg}
  .amdhsa_accum_offset {acc}
  .amdhsa_group_segment_fixed_size 0
  .amdhsa_kernarg_size 112
  .amdhsa_user_sgpr_count 2
  .amdhsa_user_sgpr_kernarg_segment_ptr 1
  .amdhsa_system_sgpr_workgroup_id_x 1
.end_amdhsa_kernel
"""
    open(path, 'w').write(out)

if __name__ == '__main__':
    gen_k1(); gen_k2()
    try:
        import gen2
        gen2.add(sys.modules[__name__])
    except ImportError:
        pass
    emit(sys.argv[1] if len(sys.argv) > 1 else f"cdna_kernels/{NAME}.s")
```
